```python
import torch

def _softmax(x, axis=-1):
    return torch.softmax(x, dim=axis)
def _gelu(x):
    return torch.nn.functional.gelu(x, approximate="tanh")
def _silu(x):
    return torch.nn.functional.silu(x)
def _sigmoid(x):
    return torch.sigmoid(x)
def _layernorm(x, axis=-1, eps=1e-5):
    m = x.mean(dim=axis, keepdim=True)
    v = x.var(dim=axis, keepdim=True, unbiased=False)
    return (x - m) / torch.sqrt(v + eps)
def _scatter_add(tgt, idx, src, axis=0):
    return tgt.clone().index_add_(axis, idx, src)
def _segment_sum(src, seg, n):
    out = torch.zeros((n,) + src.shape[1:], dtype=src.dtype)
    return out.index_add_(0, seg, src)
def _pad(x, pw):
    flat = tuple(v for pair in reversed(pw) for v in pair)
    return torch.nn.functional.pad(x, flat)

kernel_name = 'standalone__gqa_block_cached__near_ridge'

def setup_inputs():

    _w = (lambda a: (lambda t: t.to(torch.bfloat16) if t.is_floating_point() else t)(torch.as_tensor(a)))
    B, Sq, D = 8, 64, 448
    Hq, Hkv, Sk, Dh = 16, 8, 1024, 256
    assert Hq % Hkv == 0, (Hq, Hkv)
    return {
        "x": _w((lambda *s: torch.randn(*s, dtype=torch.bfloat16) * 0.8)(B, Sq, D)),
        "k_cache": _w((lambda *s: torch.randn(*s, dtype=torch.bfloat16) * 0.8)(B, Hkv, Sk, Dh)),
        "v_cache": _w((lambda *s: torch.randn(*s, dtype=torch.bfloat16) * 0.05)(B, Hkv, Sk, Dh)),
        "wq": _w((lambda *s: torch.randn(*s, dtype=torch.bfloat16) * 0.8)(D, Hq * Dh) * (D ** -0.5)),
        "wo": _w((lambda *s: torch.randn(*s, dtype=torch.bfloat16) * 0.05)(Hq * Dh, D) * ((Hq * Dh) ** -0.5)),
    }

def reference(x, k_cache, v_cache, wq, wo):
    B, Sq, D = x.shape
    Hq, Dh = 16, 256
    Hkv = k_cache.shape[1]
    rep = Hq // Hkv
    q = (lambda x, *d: x.permute(*d))((x @ wq).reshape(B, Sq, Hq, Dh), 0, 2, 1, 3)
    k = (lambda x, n, axis: torch.repeat_interleave(x, n, dim=axis))(k_cache, rep, axis=1)
    v = (lambda x, n, axis: torch.repeat_interleave(x, n, dim=axis))(v_cache, rep, axis=1)
    scores = torch.einsum("bhqd,bhkd->bhqk", q, k) * (Dh ** -0.5)
    p = _softmax(scores, axis=-1)
    o = torch.einsum("bhqk,bhkd->bhqd", p, v)
    return (lambda x, *d: x.permute(*d))(o, 0, 2, 1, 3).reshape(B, Sq, Hq * Dh) @ wo
```

```python
import re

REG_RE = re.compile(r'\b([vas])(\d+)\b|\b([vas])\[(\d+):(\d+)\]|\b(vcc|exec|m0|scc)\b')
TRANS = ("v_exp_f32", "v_log_f32", "v_rcp_f32", "v_rsq_f32", "v_sqrt_f32", "v_sin_f32", "v_cos_f32")


def regs_of(tok):
    out = []
    for m in REG_RE.finditer(tok):
        if m.group(1):
            out.append(m.group(1) + m.group(2))
        elif m.group(3):
            out += [m.group(3) + str(i) for i in range(int(m.group(4)), int(m.group(5)) + 1)]
        else:
            out.append(m.group(6))
    return out


def split_ops(s):
    ops, depth, cur = [], 0, ""
    for ch in s:
        if ch == "[":
            depth += 1
        if ch == "]":
            depth -= 1
        if ch == "," and depth == 0:
            ops.append(cur.strip()); cur = ""
        else:
            cur += ch
    if cur.strip():
        ops.append(cur.strip())
    return ops


class Ins:
    __slots__ = ("text", "op", "cls", "dst", "src", "srcc", "passes", "tag", "wide_store")

    def __init__(self, text, tag=None):
        self.text = text
        self.tag = tag
        body = text.split(";")[0].strip()
        parts = body.split(None, 1)
        self.op = op = parts[0]
        ops = split_ops(parts[1]) if len(parts) > 1 else []
        R = [regs_of(o) for o in ops]
        flat = lambda xs: [r for x in xs for r in x]
        self.dst, self.src, self.srcc, self.passes, self.wide_store = [], [], [], 0, False
        if op.endswith(":") or op.startswith("."):
            self.cls = "label"
        elif op.startswith("v_mfma"):
            self.cls = "mfma"
            self.dst = R[0]; self.src = flat(R[1:3]); self.srcc = R[3]
            self.passes = 8 if "32x32" in op else 4
        elif op.startswith("v_"):
            self.cls = "trans" if op.replace("_e32", "").replace("_e64", "") in TRANS else "valu"
            self.dst = list(R[0]); self.src = flat(R[1:])
            if op.startswith(("v_fmac", "v_dot2c", "v_writelane")):
                self.src += R[0]
            if op.startswith("v_permlane") and "swap" in op:
                self.src += R[0]; self.dst += R[1]
            if op.startswith(("v_add_co", "v_sub_co", "v_addc_co", "v_subb_co", "v_mad_u64")):
                self.dst += R[1]; self.src = flat(R[2:])
            if op.startswith("v_cmpx"):
                self.dst.append("exec")
        elif op.startswith("ds_"):
            self.cls = "ds"
            if op.startswith(("ds_read", "ds_bpermute", "ds_permute", "ds_swizzle")) or "_rtn" in op:
                self.dst = R[0]; self.src = flat(R[1:])
            else:
                self.src = flat(R)
        elif op.startswith(("buffer_", "global_")):
            self.cls = "vmem"
            is_lds = re.search(r'\blds\b', body) is not None or "_lds_" in op
            if "load" in op and not is_lds:
                self.dst = R[0]; self.src = flat(R[1:])
            elif "atomic" in op and re.search(r'\bsc0\b', body):
                self.dst = R[0]; self.src = flat(R)
            else:
                self.src = flat(R)
                if is_lds:
                    self.src.append("m0")
            if "store" in op and ("x4" in op or "x3" in op):
                self.wide_store = True
        elif op.startswith(("s_load", "s_buffer_load", "s_memtime", "s_memrealtime")):
            self.cls = "smem"
            self.dst = R[0]; self.src = flat(R[1:])
        elif op.startswith("s_"):
            self.cls = "salu"
            if op.startswith(("s_cmp", "s_waitcnt", "s_barrier", "s_cbranch", "s_branch", "s_nop", "s_endpgm", "s_setprio", "s_sleep", "s_bitcmp")):
                self.src = flat(R)
            else:
                self.dst = list(R[0]) if R else []; self.src = flat(R[1:])
                if "saveexec" in op:
                    self.dst.append("exec")
        else:
            raise ValueError("unknown instruction: " + text)


def need_states(p, c):
    n = 0
    pd = set(p.dst)
    isv = lambda i: i.cls in ("valu", "trans")
    vec = lambda s: {r for r in s if r[0] in "va" and r != "vcc"}
    sc = lambda s: {r for r in s if r[0] == "s" or r == "vcc"}
    if p.cls == "mfma":
        full = {4: 8, 8: 12}[p.passes]
        if c.cls == "mfma":
            if pd & set(c.src):
                n = max(n, full)
            if pd & set(c.srcc) and not (c.srcc == p.dst and c.passes == p.passes):
                n = max(n, {4: 6, 8: 10}[p.passes])
            if pd & set(c.dst) and c.srcc != p.dst:
                n = max(n, full)
        elif c.cls in ("valu", "trans", "ds", "vmem"):
            if pd & (set(c.src) | set(c.dst)):
                n = max(n, full)
            if isv(c) and set(p.srcc) & set(c.dst):
                n = max(n, {4: 3, 8: 7}[p.passes])
    if isv(p):
        if c.cls == "mfma" and vec(pd) & (set(c.src) | set(c.srcc)):
            n = max(n, 2)
        if c.cls == "mfma" and "exec" in pd:
            n = max(n, 4)
        if c.op.startswith("v_permlane") and vec(pd) & set(c.src):
            n = max(n, 2)
        if c.op.startswith(("v_readlane", "v_readfirstlane")) and vec(pd) & set(c.src):
            n = max(n, 1)
        if "dpp" in c.text or "row_" in c.text or "quad_perm" in c.text:
            if vec(pd) & set(c.src):
                n = max(n, 2)
        if isv(c) and sc(pd) & set(c.src):
            n = max(n, 4 if c.op.startswith(("v_readlane", "v_writelane")) else 2)
        if c.cls == "vmem" and sc(pd) & set(c.src):
            n = max(n, 5)
        if c.cls in ("salu", "smem") and sc(pd) & set(c.src):
            n = max(n, 1)
        if p.cls == "trans" and c.cls in ("valu", "mfma") and pd & set(c.src):
            n = max(n, 2 if c.cls == "mfma" else 1)
        if ("op_sel" in p.text or "sdwa" in p.text) and isv(c) and pd & (set(c.src) | set(c.dst)):
            n = max(n, 1)
    if p.wide_store and set(p.src) & set(c.dst) and c.cls != "salu":
        n = max(n, 2)
    if p.cls == "salu" and "m0" in pd and "m0" in c.src and c.cls in ("vmem", "ds"):
        n = max(n, 1)
    return n


class Asm:
    def __init__(self):
        self.items = []

    def __call__(self, text, tag=None):
        for line in text.split("\n"):
            line = line.strip()
            if line:
                self.items.append(("i", line, tag))

    def raw(self, text):
        self.items.append(("raw", text, None))

    def wait_vm(self, tag):
        self.items.append(("wvm", tag, None))

    def wait_lds(self):
        self("s_waitcnt lgkmcnt(0)")

    def finish(self):
        out, hist = [], []
        vm, lg = [], []
        smem_out = False
        vm_seen = set()

        def put(text, tag=None):
            ins = Ins(text, tag)
            if ins.cls == "label":
                out.append(text); return ins
            need, dist = 0, 0
            for p in reversed(hist):
                need = max(need, need_states(p, ins) - dist)
                dist += (int(p.text.split()[1]) + 1) if p.op == "s_nop" else 1
                if dist >= 20:
                    break
            while need > 0:
                k = min(need, 16)
                nop = Ins(f"s_nop {k-1}"); hist.append(nop); out.append("    " + nop.text); need -= k
            hist.append(ins); out.append("    " + text)
            if len(hist) > 64:
                del hist[:32]
            return ins

        def apply_wait(text):
            nonlocal smem_out
            m = re.search(r'vmcnt\((\d+)\)', text)
            if m:
                n = int(m.group(1)); del vm[:max(0, len(vm) - n)]
            m = re.search(r'lgkmcnt\((\d+)\)', text)
            if m:
                n = int(m.group(1)); del lg[:max(0, len(lg) - n)]
                if n == 0:
                    smem_out = False

        for kind, a, tag in self.items:
            if kind == "raw":
                out.append(a); continue
            if kind == "wvm":
                assert a in vm_seen, ("wait on a tag never issued", a)
                idx = [i for i, o in enumerate(vm) if o.tag == a]
                if idx:
                    n = len(vm) - 1 - idx[-1]
                    assert n <= 63
                    t = f"s_waitcnt vmcnt({n})"; put(t); apply_wait(t)
                continue
            ins = Ins(a, tag)
            if ins.cls == "label" or ins.op.startswith(("s_cbranch", "s_branch")):
                put(a, tag); continue
            touched = set(ins.src) | set(ins.dst) | set(ins.srcc)
            w = []
            idx = [i for i, o in enumerate(vm) if set(o.dst) & touched]
            if idx:
                w.append(f"vmcnt({min(63, len(vm) - 1 - idx[-1])})")
            idx = [i for i, o in enumerate(lg) if set(o.dst) & touched]
            if idx:
                n = 0 if smem_out else min(15, len(lg) - 1 - idx[-1])
                w.append(f"lgkmcnt({n})")
            if w:
                t = "s_waitcnt " + " ".join(w); put(t); apply_wait(t)
            ins = put(a, tag)
            if ins.op == "s_waitcnt":
                apply_wait(a)
            elif ins.cls == "vmem":
                vm.append(ins); vm_seen.add(tag)
            elif ins.cls == "ds":
                lg.append(ins)
            elif ins.cls == "smem":
                lg.append(ins); smem_out = True
        return "\n".join(out)


def interleave(main, fill, lead=0):
    n, m = len(main), len(fill)
    k = 0
    res = []
    for i, x in enumerate(main):
        res.append(x)
        upto = min(m, ((i + 1 + lead) * m + n - 1) // n)
        while k < upto:
            res.append(fill[k]); k += 1
    res += fill[k:]
    return res


def kernel_header(name):
    return f".text\n.globl {name}\n.p2align 8\n.type {name},@function\n{name}:"


def kernel_desc(name, vgpr, accum, sgpr=102):
    return f""".section .rodata,"a"
.p2align 6
.amdhsa_kernel {name}
  .amdhsa_next_free_vgpr {vgpr}
  .amdhsa_next_free_sgpr {sgpr}
  .amdhsa_accum_offset {accum}
  .amdhsa_group_segment_fixed_size 0
  .amdhsa_kernarg_size 64
  .amdhsa_user_sgpr_count 2
  .amdhsa_user_sgpr_kernarg_segment_ptr 1
  .amdhsa_system_sgpr_workgroup_id_x 1
.end_amdhsa_kernel
"""
```

```python
import sys
from asmlib import *

QWS = 0
OWS = 8 << 20
SWS = 28 << 20
PWS = 32 << 20
WS_SIZE = 0x10000000


def prologue(A, nwg, ptrs):
    A(f"s_cmp_ge_u32 s2, {nwg}\ns_cbranch_scc1 {A.end}")
    for r, (off, size) in ptrs.items():
        A(f"s_load_dwordx2 s[{r}:{r+1}], s[0:1], {off}")
    A("v_lshrrev_b32 v2, 6, v0\nv_and_b32 v1, 63, v0\nv_readfirstlane_b32 s6, v2")
    A("s_and_b32 s3, s2, 7\ns_lshr_b32 s5, s2, 3\ns_lshr_b32 s4, s5, 2\ns_and_b32 s5, s5, 3")
    for r, (off, size) in ptrs.items():
        A(f"s_mov_b32 s{r+2}, {size}\ns_mov_b32 s{r+3}, 0x20000")
    A("s_waitcnt lgkmcnt(0)")


def k1_qproj(wpol):
    A = Asm(); A.end = "L_k1_end"
    A.raw(kernel_header("qproj_kernel"))
    prologue(A, 256, {8: (0, 8 * 64 * 896), 12: (24, 448 * 8192), 16: (56, WS_SIZE)})
    NS, SLOT = 6, 24576
    A("v_lshrrev_b32 v2, 3, v1\nv_lshrrev_b32 v3, 4, v1\nv_and_b32 v4, 7, v1")
    A("s_lshl_b32 s20, s6, 4")
    for p in range(2):
        A(f"v_add_u32 v5, s20, v2\nv_add_u32 v5, {8*p}, v5\nv_mul_u32_u24 v5, 896, v5")
        A(f"v_add_u32 v6, {4*p}, v3\nv_xor_b32 v6, v6, v4\nv_lshl_add_u32 v{10+p}, v6, 4, v5")
    A("v_and_b32 v4, 15, v1\nv_lshlrev_b32 v5, 2, v3\nv_xor_b32 v4, v4, v5\nv_lshlrev_b32 v4, 4, v4\nv_lshl_add_u32 v12, v3, 13, v4")
    A("v_and_b32 v2, 31, v1\nv_lshrrev_b32 v3, 5, v1\nv_bfe_u32 v4, v1, 1, 3\nv_xor_b32 v4, v4, v3\nv_lshlrev_b32 v4, 4, v4\nv_lshl_add_u32 v13, v2, 7, v4")
    for t in range(1, 4):
        A(f"v_xor_b32 v{13+t}, {32*t}, v13")
    A("v_bfe_u32 v4, v1, 2, 2")
    A("v_lshl_add_u32 v5, v3, 3, v4\nv_lshlrev_b32 v5, 8, v5")
    A("v_xor_b32 v6, s6, v4\nv_lshlrev_b32 v6, 6, v6")
    A("v_bfe_u32 v7, v1, 4, 1\nv_lshl_add_u32 v6, v7, 5, v6")
    A("v_and_b32 v7, 1, v1\nv_lshl_add_u32 v6, v7, 4, v6")
    A("v_bfe_u32 v7, v1, 1, 1\nv_lshl_add_u32 v6, v7, 3, v6")
    A("v_add_u32 v17, v5, v6")
    A("s_mul_i32 s21, s4, 57344")
    A("s_lshl_b32 s22, s3, 10\ns_lshl_b32 s23, s5, 8\ns_add_u32 s22, s22, s23\ns_lshl_b32 s23, s6, 17\ns_add_u32 s22, s22, s23")
    A("s_lshl_b32 s24, s6, 11\ns_lshl_b32 s25, s6, 12\ns_add_u32 s25, s25, 8192")

    def issue(kc):
        base = (kc % NS) * SLOT
        for p in range(2):
            A(f"s_add_u32 m0, s24, {base + 1024*p}")
            A(f"buffer_load_dwordx4 v{10+p}, s[8:11], s21 offen lds", tag=f"c{kc}")
        A("s_add_u32 s21, s21, 128")
        for i in range(4):
            A(f"s_add_u32 m0, s25, {base + 1024*i}\ns_add_u32 s26, s22, {(kc*64 + 4*i) * 8192}")
            A(f"buffer_load_dwordx4 v12, s[12:15], s26 offen {wpol} lds", tag=f"c{kc}")
    for kc in range(6):
        issue(kc)
    for kc in range(7):
        A.wait_vm(f"c{kc}"); A("s_barrier")
        if kc == 1:
            issue(6)
        base = (kc % NS) * SLOT
        if kc == 0:
            for r in range(13, 18): A(f"v_mov_b32 v{r+7}, v{r}")
        else:
            for r in range(13, 18): A(f"v_add_u32 v{r+7}, {base}, v{r}")
        for t in range(4):
            f = 32 + 12 * t
            A(f"ds_read_b64_tr_b16 v[{f}:{f+1}], v24 offset:{8192 + t*4096}")
            A(f"ds_read_b64_tr_b16 v[{f+2}:{f+3}], v24 offset:{8192 + t*4096 + 1024}")
            A(f"ds_read_b128 v[{f+4}:{f+7}], v{20+t}")
            A(f"ds_read_b128 v[{f+8}:{f+11}], v{20+t} offset:4096")
        for t in range(4):
            f = 32 + 12 * t
            for rb in range(2):
                acc = f"v[{96+16*rb}:{111+16*rb}]"
                c = "0" if (kc == 0 and t == 0) else acc
                A(f"v_mfma_f32_32x32x16_bf16 {acc}, v[{f}:{f+3}], v[{f+4+4*rb}:{f+7+4*rb}], {c}")
    A("s_lshl_b32 s20, s4, 3\ns_add_u32 s20, s20, s3\ns_lshl_b32 s20, s20, 16")
    A("s_lshr_b32 s21, s5, 1\ns_lshl_b32 s21, s21, 15\ns_add_u32 s20, s20, s21")
    A("s_and_b32 s21, s5, 1\ns_lshl_b32 s21, s21, 13\ns_add_u32 s20, s20, s21\ns_lshl_b32 s21, s6, 11\ns_add_u32 s20, s20, s21")
    A(f"s_add_u32 s20, s20, {QWS}\ns_add_u32 s21, s20, 16384")
    A("v_lshlrev_b32 v2, 4, v1")
    for rb in range(2):
        for j in range(8):
            A(f"v_cvt_pk_bf16_f32 v{32+8*rb+j}, v{96+16*rb+2*j}, v{97+16*rb+2*j}")
        for ap in range(2):
            A(f"buffer_store_dwordx4 v[{32+8*rb+4*ap}:{35+8*rb+4*ap}], v2, s[16:19], s{20+rb} offen offset:{1024*ap}")
    A("L_k1_end:\ns_endpgm")
    return A.finish() + "\n" + kernel_desc("qproj_kernel", 128, 128), "; @launch kernel=qproj_kernel grid=(256,1,1) block=(256,1,1) lds=%d" % (NS * SLOT)


def k2_attn(pol):
    A = Asm(); A.end = "L_k2_end"
    A.raw(kernel_header("attn_kernel"))
    prologue(A, 256, {8: (8, 1 << 25), 12: (16, 1 << 25), 16: (56, WS_SIZE)})
    S, P, AK, AV, DK, DV, T0 = 0, 128, 192, 200, 204, 208, 212
    A("v_mov_b32 v220, v1")
    L = "v220"
    A("s_lshl_b32 s20, s4, 3\ns_add_u32 s20, s20, s3\ns_lshl_b32 s21, s20, 16\ns_lshl_b32 s22, s6, 14\ns_add_u32 s21, s21, s22")
    A(f"s_add_u32 s21, s21, {QWS}\nv_lshlrev_b32 v{T0}, 4, {L}")
    for t in range(16):
        if t and t % 4 == 0: A("s_add_u32 s21, s21, 4096")
        A(f"buffer_load_dwordx4 a[{4*t}:{4*t+3}], v{T0}, s[16:19], s21 offen offset:{1024*(t%4)}")
    A(f"v_lshrrev_b32 v{T0+1}, 5, {L}\nv_and_b32 v{T0+2}, 31, {L}")
    A(f"s_and_b32 s22, s6, 1\ns_lshl_b32 s22, s22, 3\ns_lshl_b32 s23, s6, 12")
    A(f"v_lshlrev_b32 v{T0+3}, 9, v{T0+1}\nv_add_u32 v{T0+3}, s23, v{T0+3}")
    for ii in range(4):
        A(f"v_add_u32 v{T0+4}, {2*ii}, v{T0+1}\nv_add_u32 v{T0+4}, s22, v{T0+4}\nv_xor_b32 v{T0+4}, v{T0+4}, v{T0+2}")
        A(f"v_lshl_add_u32 v{DK+ii}, v{T0+4}, 4, v{T0+3}")
    for ii in range(2):
        A(f"v_add_u32 v{T0+4}, {2*ii}, v{T0+1}\nv_lshlrev_b32 v{T0+4}, 2, v{T0+4}\nv_xor_b32 v{T0+4}, v{T0+4}, v{T0+2}")
        A(f"v_lshl_add_u32 v{DV+ii}, v{T0+4}, 4, v{T0+3}")
    A(f"v_and_b32 v{T0+4}, 15, {L}\nv_xor_b32 v{T0+4}, v{T0+4}, v{T0+1}\nv_lshlrev_b32 v{T0+4}, 4, v{T0+4}\nv_lshl_add_u32 v{AK}, v{T0+2}, 9, v{T0+4}")
    for t in range(1, 8):
        A(f"v_xor_b32 v{AK+t}, {32*t}, v{AK}")
    A(f"v_bfe_u32 v{T0+4}, {L}, 2, 2\nv_lshl_add_u32 v{T0+5}, v{T0+1}, 2, v{T0+4}\nv_lshlrev_b32 v{T0+5}, 9, v{T0+5}")
    A(f"v_lshl_add_u32 v{T0+5}, v{T0+4}, 6, v{T0+5}")
    A(f"v_bfe_u32 v{T0+6}, {L}, 4, 1\nv_lshl_add_u32 v{T0+5}, v{T0+6}, 5, v{T0+5}")
    A(f"v_and_b32 v{T0+6}, 3, {L}\nv_lshl_add_u32 v{AV}, v{T0+6}, 3, v{T0+5}")
    for d in range(1, 4):
        A(f"v_xor_b32 v{AV+d}, {64*d}, v{AV}")
    A("s_lshl_b32 s24, s20, 19\ns_lshl_b32 s25, s5, 17\ns_add_u32 s24, s24, s25")

    def issue(i):
        A(f"s_add_u32 m0, s23, {(i % 4) * 16384}\ns_add_u32 s26, s24, {(i % 8) * 16384}")
        for ii in range(4):
            if i < 8:
                A(f"buffer_load_dwordx4 v{DK+ii}, s[8:11], s26 offen offset:{1024*ii} {pol} lds", tag=f"t{i}")
            else:
                A(f"buffer_load_dwordx4 v{DV+ii%2}, s[12:15], s26 offen offset:{1024*ii} {pol} lds", tag=f"t{i}")
    for i in range(3):
        issue(i)
    FR = 64
    for i in range(8):
        A.wait_vm(f"t{i}"); A("s_barrier"); issue(i + 3)
        T = (i % 4) * 16384
        rd = lambda t: A(f"ds_read_b128 a[{FR+4*t}:{FR+4*t+3}], v{AK + t % 8} offset:{T + 256*(t//8)}")
        for t in range(6): rd(t)
        acc = f"v[{S+16*i}:{S+16*i+15}]"
        for t in range(16):
            A(f"v_mfma_f32_32x32x16_bf16 {acc}, a[{FR+4*t}:{FR+4*t+3}], a[{4*t}:{4*t+3}], {'0' if t == 0 else acc}")
            if t + 6 < 16: rd(t + 6)
    M, LS, X = T0, T0 + 1, T0 + 2
    A(f"v_max3_f32 v{M}, v0, v1, v2\nv_max_f32 v{M}, v{M}, v3")
    for r in range(4, 128, 2):
        A(f"v_max3_f32 v{M}, v{M}, v{r}, v{r+1}")
    A(f"v_mov_b32 v{X}, v{M}\nv_permlane32_swap_b32 v{M}, v{X}\nv_max_f32 v{M}, v{M}, v{X}")
    A(f"s_mov_b32 s30, 0x3db8aa3b\nv_mul_f32 v{M}, s30, v{M}\nv_mov_b32 v{LS}, 0\nv_mov_b32 v{X}, 0")
    for r in range(0, 128, 4):
        for k in range(4): A(f"v_fma_f32 v{r+k}, v{r+k}, s30, -v{M}")
        for k in range(4): A(f"v_exp_f32 v{r+k}, v{r+k}")
        A(f"v_add_f32 v{LS}, v{LS}, v{r}\nv_add_f32 v{X}, v{X}, v{r+1}\nv_add_f32 v{LS}, v{LS}, v{r+2}\nv_add_f32 v{X}, v{X}, v{r+3}")
        A(f"v_cvt_pk_bf16_f32 v{P+r//2}, v{r}, v{r+1}\nv_cvt_pk_bf16_f32 v{P+r//2+1}, v{r+2}, v{r+3}")
    A(f"v_add_f32 v{LS}, v{LS}, v{X}\nv_mov_b32 v{X}, v{LS}\nv_permlane32_swap_b32 v{LS}, v{X}\nv_add_f32 v{LS}, v{LS}, v{X}")
    A(f"s_lshl_b32 s27, s20, 2\ns_add_u32 s27, s27, s5\ns_lshl_b32 s28, s27, 2\ns_add_u32 s28, s28, s6\ns_lshl_b32 s28, s28, 8\ns_add_u32 s28, s28, {SWS}")
    A(f"v_and_b32 v{X}, 31, {L}\nv_lshlrev_b32 v{X}, 3, v{X}")
    A(f"buffer_store_dwordx2 v[{M}:{LS}], v{X}, s[16:19], s28 offen")
    for i in range(8, 16):
        A.wait_vm(f"t{i}"); A("s_barrier")
        if i + 3 < 16: issue(i + 3)
        T = (i % 4) * 16384
        def rd(n):
            u, db = n // 8, n % 8
            for jj in range(2):
                A(f"ds_read_b64_tr_b16 a[{FR+4*n+2*jj}:{FR+4*n+2*jj+1}], v{AV + db % 4} offset:{T + (16*u + 8*jj)*512 + 256*(db//4)}")
        for n in range(5): rd(n)
        for n in range(16):
            u, db = n // 8, n % 8
            acc = f"v[{16*db}:{16*db+15}]"
            pb = P + 8 * (i - 8) + 4 * u
            A(f"v_mfma_f32_32x32x16_bf16 {acc}, a[{FR+4*n}:{FR+4*n+3}], v[{pb}:{pb+3}], {'0' if (i == 8 and u == 0) else acc}")
            if n + 5 < 16: rd(n + 5)
    A(f"s_lshl_b32 s28, s27, 16\ns_and_b32 s29, s6, 1\ns_lshl_b32 s29, s29, 15\ns_add_u32 s28, s28, s29\ns_lshr_b32 s29, s6, 1\ns_lshl_b32 s29, s29, 13\ns_add_u32 s28, s28, s29\ns_add_u32 s28, s28, {OWS}")
    A(f"v_bfe_u32 v{X}, {L}, 4, 1\nv_lshlrev_b32 v{X}, 14, v{X}\nv_lshrrev_b32 v{X+1}, 5, {L}\nv_lshl_add_u32 v{X}, v{X+1}, 8, v{X}\nv_and_b32 v{X+1}, 15, {L}\nv_lshl_add_u32 v{X}, v{X+1}, 4, v{X}")
    for db in range(8):
        if db == 4: A("s_add_u32 s28, s28, 4096")
        for j in range(8):
            A(f"v_cvt_pk_bf16_f32 v{P+8*db+j}, v{16*db+2*j}, v{16*db+2*j+1}")
        for ap in range(2):
            A(f"buffer_store_dwordx4 v[{P+8*db+4*ap}:{P+8*db+4*ap+3}], v{X}, s[16:19], s28 offen offset:{1024*(db%4) + 512*ap}")
    A("L_k2_end:\ns_endpgm")
    return A.finish() + "\n" + kernel_desc("attn_kernel", 224 + 128, 224), "; @launch kernel=attn_kernel grid=(256,1,1) block=(256,1,1) lds=65536"


def k3_oproj(wpol):
    A = Asm(); A.end = "L_k3_end"
    A.raw(kernel_header("oproj_kernel"))
    prologue(A, 256, {12: (32, 4096 * 896), 16: (56, WS_SIZE)})
    NS, SLOT, OB = 5, 28672, 5 * 28672
    DW, AW, B, IN, ST, ACC, FR, T0 = 4, 12, 32, 96, 160, 176, 208, 20
    A("s_lshl_b32 s20, s4, 3\ns_add_u32 s20, s20, s3")
    A(f"s_lshl_b32 s21, s20, 18\ns_lshl_b32 s22, s5, 14\ns_add_u32 s21, s21, s22\ns_lshl_b32 s22, s6, 12\ns_add_u32 s21, s21, s22\ns_add_u32 s21, s21, {OWS}")
    A(f"s_lshl_b32 s23, s20, 12\ns_lshr_b32 s22, s6, 1\ns_lshl_b32 s22, s22, 9\ns_add_u32 s23, s23, s22\ns_lshl_b32 s22, s5, 7\ns_add_u32 s23, s23, s22\ns_add_u32 s23, s23, {SWS}")
    A("v_lshlrev_b32 v2, 4, v1\nv_and_b32 v3, 15, v1\nv_lshlrev_b32 v3, 3, v3")
    for s in range(4):
        A(f"buffer_load_dwordx2 v[{ST+2*s}:{ST+2*s+1}], v3, s[16:19], s23 offen offset:{1024*s}")
    for s in range(4):
        for k in range(4):
            r = IN + 16 * s + 4 * k
            A(f"buffer_load_dwordx4 v[{r}:{r+3}], v2, s[16:19], s21 offen offset:{1024*k}")
        A("s_add_u32 s21, s21, 65536")
    A(f"v_lshrrev_b32 v{T0}, 3, v1\nv_and_b32 v{T0+1}, 7, v1")
    for ii in range(7):
        A(f"v_add_u32 v{T0+2}, {8*ii}, v{T0}\nv_mul_u32_u24 v{T0+3}, 9363, v{T0+2}\nv_lshrrev_b32 v{T0+3}, 16, v{T0+3}")
        A(f"v_and_b32 v{T0+3}, 6, v{T0+3}\nv_xor_b32 v{T0+3}, v{T0+3}, v{T0+1}\nv_lshlrev_b32 v{T0+3}, 4, v{T0+3}\nv_lshl_add_u32 v{DW+ii}, v{T0+2}, 7, v{T0+3}")
    A("s_mul_i32 s24, s3, 458752\ns_mul_i32 s25, s6, 7168\ns_add_u32 s24, s24, s25")

    def issue(k):
        A(f"s_add_u32 s26, s24, {k * SLOT}")
        for ii in range(7):
            A(f"s_add_u32 m0, s25, {(k % NS) * SLOT + 1024*ii}")
            A(f"buffer_load_dwordx4 v{DW+ii}, s[12:15], s26 offen {wpol} lds", tag=f"w{k}")
    for k in range(4):
        issue(k)
    A(f"v_bfe_u32 v{T0}, v1, 2, 3\nv_lshrrev_b32 v{T0+1}, 5, v1\nv_lshl_add_u32 v{T0+1}, v{T0+1}, 4, v{T0}\nv_mul_u32_u24 v{T0+1}, 896, v{T0+1}")
    A(f"v_and_b32 v{T0}, 6, v{T0}\nv_lshlrev_b32 v{T0}, 4, v{T0}")
    A(f"v_and_b32 v{T0+2}, 3, v1\nv_lshlrev_b32 v{T0+2}, 3, v{T0+2}\ns_mul_i32 s27, s6, 224\nv_add_u32 v{T0+2}, s27, v{T0+2}")
    for cb in range(7):
        A(f"v_add_u32 v{T0+3}, {32*cb}, v{T0+2}\nv_xor_b32 v{T0+3}, v{T0+3}, v{T0}\nv_add_u32 v{AW+cb}, v{T0+3}, v{T0+1}")
    W = ST + 8
    A(f"v_max_f32 v{T0}, v{ST}, v{ST+2}\nv_max3_f32 v{T0}, v{T0}, v{ST+4}, v{ST+6}")
    for s in range(4):
        A(f"v_sub_f32 v{W+s}, v{ST+2*s}, v{T0}\nv_exp_f32 v{W+s}, v{W+s}")
    A(f"v_mul_f32 v{T0+1}, v{W}, v{ST+1}")
    for s in range(1, 4):
        A(f"v_fmac_f32 v{T0+1}, v{W+s}, v{ST+2*s+1}")
    A(f"v_rcp_f32 v{T0+1}, v{T0+1}")
    for s in range(4):
        A(f"v_mul_f32 v{W+s}, v{W+s}, v{T0+1}")
    A(f"s_lshl_b32 s28, s6, 12\ns_add_u32 s28, s28, {OB}\nv_add_u32 v3, s28, v2")
    for k in range(4):
        for j in range(4):
            for s in range(4):
                r = IN + 16 * s + 4 * k + j
                A(f"v_lshlrev_b32 v{T0+2}, 16, v{r}\nv_and_b32 v{T0+3}, 0xffff0000, v{r}")
                if s == 0: A(f"v_mul_f32 v{T0+4}, v{W}, v{T0+2}\nv_mul_f32 v{T0+5}, v{W}, v{T0+3}")
                else: A(f"v_fmac_f32 v{T0+4}, v{W+s}, v{T0+2}\nv_fmac_f32 v{T0+5}, v{W+s}, v{T0+3}")
            A(f"v_cvt_pk_bf16_f32 v{B+4*k+j}, v{T0+4}, v{T0+5}")
        A(f"ds_write_b128 v3, v[{B+4*k}:{B+4*k+3}] offset:{1024*k}")
    A("s_waitcnt lgkmcnt(0)\ns_barrier")
    A(f"v_add_u32 v3, {OB}, v2")
    for k in range(16):
        A(f"ds_read_b128 v[{B+4*k}:{B+4*k+3}], v3 offset:{1024*k}")
    A("s_waitcnt lgkmcnt(0)")
    cur = 0
    for k in range(16):
        A.wait_vm(f"w{k}"); A("s_barrier")
        if k + 4 < 16: issue(k + 4)
        base = (k % NS) * SLOT
        win = (base // (2 * SLOT)) * 2 * SLOT
        if win != cur:
            for cb in range(7): A(f"v_add_u32 v{AW+cb}, {(win - cur) & 0xffffffff}, v{AW+cb}")
            cur = win
        for cb in range(7):
            for jj in range(2):
                A(f"ds_read_b64_tr_b16 v[{FR+4*cb+2*jj}:{FR+4*cb+2*jj+1}], v{AW+cb} offset:{base - win + jj*8*896}")
        for cb in range(7):
            acc = f"v[{ACC+4*cb}:{ACC+4*cb+3}]"
            A(f"v_mfma_f32_16x16x32_bf16 {acc}, v[{FR+4*cb}:{FR+4*cb+3}], v[{B+4*k}:{B+4*k+3}], {'0' if k == 0 else acc}")
    A(f"s_lshl_b32 s21, s3, 3\ns_add_u32 s21, s21, s4\ns_lshl_b32 s21, s21, 2\ns_add_u32 s21, s21, s5\ns_mul_i32 s21, s21, {16*1792}\ns_mul_i32 s22, s6, 448\ns_add_u32 s21, s21, s22\ns_add_u32 s21, s21, {PWS}")
    A("v_and_b32 v2, 15, v1\nv_mul_u32_u24 v2, 1792, v2\nv_lshrrev_b32 v3, 4, v1\nv_lshl_add_u32 v2, v3, 4, v2")
    for cb in range(7):
        A(f"buffer_store_dwordx4 v[{ACC+4*cb}:{ACC+4*cb+3}], v2, s[16:19], s21 offen offset:{64*cb}")
    A("L_k3_end:\ns_endpgm")
    return A.finish() + "\n" + kernel_desc("oproj_kernel", 240, 240), "; @launch kernel=oproj_kernel grid=(256,1,1) block=(256,1,1) lds=%d" % (OB + 16384)


def k4_sum():
    A = Asm(); A.end = "L_k4_end"
    A.raw(kernel_header("sum_kernel"))
    prologue(A, 224, {12: (40, 8 * 64 * 896), 16: (56, WS_SIZE)})
    A(f"s_lshl_b32 s20, s2, 8\nv_add_u32 v2, s20, v0\nv_lshlrev_b32 v3, 4, v2\nv_lshlrev_b32 v2, 3, v2\ns_mov_b32 s21, {PWS}")
    for h in range(8):
        A(f"buffer_load_dwordx4 v[{8+4*h}:{11+4*h}], v3, s[16:19], s21 offen\ns_add_u32 s21, s21, {512*1792}")
    for h in range(1, 8):
        for j in range(4): A(f"v_add_f32 v{8+j}, v{8+j}, v{8+4*h+j}")
    A("v_cvt_pk_bf16_f32 v4, v8, v9\nv_cvt_pk_bf16_f32 v5, v10, v11")
    A("buffer_store_dwordx2 v[4:5], v2, s[12:15], 0 offen")
    A("L_k4_end:\ns_endpgm")
    return A.finish() + "\n" + kernel_desc("sum_kernel", 40, 40), "; @launch kernel=sum_kernel grid=(224,1,1) block=(256,1,1) lds=0"


def build(pol="nt", wpol=""):
    ks = [k1_qproj(wpol), k2_attn(pol), k3_oproj(wpol), k4_sum()]
    head = "\n".join(l for _, l in ks)
    return head + '\n.amdgcn_target "amdgcn-amd-amdhsa--gfx950"\n' + "\n".join(c for c, _ in ks)


if __name__ == "__main__":
    open("base_nt.s", "w").write(build("nt"))
    open("base_def.s", "w").write(build(""))
```

```python
from base import *
def empty():
    return kernel_header("empty_kernel") + "\n    s_endpgm\n" + kernel_desc("empty_kernel", 8, 8), "; @launch kernel=empty_kernel grid=(256,1,1) block=(256,1,1) lds=0"
def build2(pre, post, pol=""):
    ks = [k1_qproj(""), k2_attn(pol), k3_oproj(""), k4_sum()]
    e = empty()
    head = "\n".join([e[1]] * pre + [l for _, l in ks] + [e[1]] * post)
    return head + '\n.amdgcn_target "amdgcn-amd-amdhsa--gfx950"\n' + "\n".join(c for c, _ in ks) + "\n" + e[0]
for pre, post in ((1, 0), (0, 1), (0, 4), (4, 0)):
    open(f"bv_{pre}_{post}.s", "w").write(build2(pre, post))
```

```python
from base import *
STAMP = 64 << 20
def stamp(name, slot):
    A = Asm()
    A.raw(kernel_header(name))
    A(f"s_cmp_ge_u32 s2, 1\ns_cbranch_scc1 L_{name}_end\ns_load_dwordx2 s[4:5], s[0:1], 56\ns_memrealtime s[6:7]\ns_waitcnt lgkmcnt(0)")
    A(f"v_mov_b32 v1, {STAMP + 64*slot}\nv_mov_b32 v2, s6\nglobal_store_dword v1, v2, s[4:5]")
    A(f"L_{name}_end:\ns_endpgm")
    return A.finish() + "\n" + kernel_desc(name, 8, 8), f"; @launch kernel={name} grid=(1,1,1) block=(64,1,1) lds=0"
def delay(mult):
    name = "delay_kernel"
    A = Asm()
    A.raw(kernel_header(name))
    A(f"s_cmp_ge_u32 s2, 1\ns_cbranch_scc1 L_d_end\ns_load_dwordx2 s[4:5], s[0:1], 56\ns_waitcnt lgkmcnt(0)")
    A(f"v_mov_b32 v1, {STAMP}\nglobal_load_dword v2, v1, s[4:5] sc1\nglobal_load_dword v3, v1, s[4:5] offset:64 sc1")
    A(f"v_sub_u32 v2, v3, v2\nv_readfirstlane_b32 s8, v2\ns_min_u32 s8, s8, 10000\ns_mul_i32 s8, s8, {mult}\ns_memrealtime s[6:7]\ns_waitcnt lgkmcnt(0)")
    A("L_spin:\ns_memrealtime s[10:11]\ns_waitcnt lgkmcnt(0)\ns_sub_u32 s9, s10, s6\ns_cmp_lt_u32 s9, s8\ns_cbranch_scc1 L_spin")
    A("L_d_end:\ns_endpgm")
    return A.finish() + "\n" + kernel_desc(name, 8, 8), f"; @launch kernel={name} grid=(1,1,1) block=(64,1,1) lds=0"
def build3(a, b, mult, pol=""):
    ks = [k1_qproj(""), k2_attn(pol), k3_oproj(""), k4_sum()]
    s0, s1, d = stamp("st0_kernel", 0), stamp("st1_kernel", 1), delay(mult)
    order = []
    for i in range(5):
        if i == a: order.append(s0[1])
        if i == b: order.append(s1[1])
        if i < 4: order.append(ks[i][1])
    order.append(d[1])
    return "\n".join(order) + '\n.amdgcn_target "amdgcn-amd-amdhsa--gfx950"\n' + "\n".join(c for c, _ in ks + [s0, s1, d])
for name, (a, b, m) in {"d0": (0, 4, 0), "dall": (0, 4, 4), "d1": (0, 1, 4), "d2": (1, 2, 4), "d3": (2, 3, 4), "d4": (3, 4, 4)}.items():
    open(f"diag_{name}.s", "w").write(build3(a, b, m))
```

```python
import sys, numpy as np
KN = "standalone__gqa_block_cached__near_ridge_kernel"

def footer(name=KN, vgpr=128, sgpr=96, accum=128):
    return f"""
.section .rodata,"a"
.p2align 6
.amdhsa_kernel {name}
  .amdhsa_next_free_vgpr {vgpr}
  .amdhsa_next_free_sgpr {sgpr}
  .amdhsa_accum_offset {accum}
  .amdhsa_group_segment_fixed_size 0
  .amdhsa_kernarg_size 64
  .amdhsa_user_sgpr_count 2
  .amdhsa_user_sgpr_kernarg_segment_ptr 1
  .amdhsa_system_sgpr_workgroup_id_x 1
.end_amdhsa_kernel
"""

def gen(NW, DEPTH, WN, SN, iters, wkb, share, rot, reg=False, wpol="", spol="nt", kdirect=False):
    lds = NW * DEPTH * 1024
    L = []
    e = L.append
    e(f"; @launch grid=(256,1,1) block=({NW*64},1,1) lds={lds}")
    e('.amdgcn_target "amdgcn-amd-amdhsa--gfx950"\n.text\n.globl %s\n.p2align 8\n.type %s,@function\n%s:' % (KN, KN, KN))
    e("s_cmp_ge_u32 s2, 256\ns_cbranch_scc1 L_end")
    e("s_memrealtime s[40:41]")
    e("s_load_dwordx2 s[4:5], s[0:1], 8")
    e("s_load_dwordx2 s[6:7], s[0:1], 16")
    e("s_load_dwordx2 s[24:25], s[0:1], 24")
    e("s_load_dwordx2 s[26:27], s[0:1], 56")
    e("v_lshrrev_b32 v1, 6, v0\ns_nop 0\nv_readfirstlane_b32 s30, v1")
    e("v_and_b32 v2, 63, v0\nv_lshlrev_b32 v2, 4, v2")
    if kdirect:
        e("v_and_b32 v3, 31, v0\nv_lshlrev_b32 v3, 9, v3\nv_bfe_u32 v4, v0, 5, 1\nv_lshl_add_u32 v3, v4, 4, v3")
    e("s_waitcnt lgkmcnt(0)")
    e("s_and_b32 s31, s2, 7\ns_lshr_b32 s32, s2, 3")
    sh = {1: 0, 2: 1, 4: 2}[share]
    e(f"s_lshr_b32 s33, s32, {sh}\ns_lshl_b32 s33, s33, 3\ns_add_u32 s33, s33, s31")
    nreg = 256 // share
    e(f"s_cmp_ge_u32 s33, {nreg//2}\ns_cselect_b32 s8, s6, s4\ns_cselect_b32 s9, s7, s5")
    e(f"s_and_b32 s33, s33, {nreg//2-1}\ns_lshl_b32 s34, s33, {18+sh}")
    e("s_mov_b32 s10, 0x2000000\ns_mov_b32 s11, 0x20000")
    if kdirect:
        e("s_lshl_b32 s35, s30, 14\ns_add_u32 s34, s34, s35")
    else:
        e("s_lshl_b32 s35, s30, 10\ns_add_u32 s34, s34, s35")
    e("s_mov_b32 s12, s24\ns_mov_b32 s13, s25\ns_mov_b32 s14, 0x380000\ns_mov_b32 s15, 0x20000")
    e(f"s_mul_i32 s37, s31, {448*1024}")
    e(f"s_mul_i32 s36, s32, {rot*(wkb//32)*1024 // (NW*1024) * (NW*1024)}\ns_lshl_b32 s35, s30, 10\ns_add_u32 s36, s36, s35")
    e(f"s_mul_i32 s38, s30, {DEPTH*1024}")
    per = WN + SN
    import math
    unroll = DEPTH // math.gcd(DEPTH, per)
    assert iters % unroll == 0, (iters, unroll)
    e(f"s_mov_b32 s39, {iters//unroll}")
    e("s_mov_b32 s45, 0")
    e("L_loop:")
    slot = 0
    for u in range(unroll):
        for w in range(WN):
            if reg:
                e(f"s_add_u32 s44, s37, s36")
                e(f"buffer_load_dwordx4 v[{16+4*(slot%16)}:{19+4*(slot%16)}], v2, s[12:15], s44 offen {wpol}")
            else:
                e(f"s_add_u32 m0, s38, {slot*1024}\ns_add_u32 s44, s37, s36")
                e(f"buffer_load_dwordx4 v2, s[12:15], s44 offen {wpol} lds")
            e(f"s_add_u32 s36, s36, {NW*1024}\ns_cmp_ge_u32 s36, {wkb*1024}\ns_cselect_b32 s43, {wkb*1024}, 0\ns_sub_u32 s36, s36, s43")
            e(f"s_waitcnt vmcnt({DEPTH-1})")
            slot = (slot + 1) % DEPTH
        for s in range(SN):
            if kdirect:
                e(f"s_add_u32 s44, s34, s45")
                e(f"buffer_load_dwordx4 v[{16+4*(slot%16)}:{19+4*(slot%16)}], v3, s[8:11], s44 offen {spol}")
                e(f"s_add_u32 s45, s45, 32\ns_cmp_eq_u32 s45, 512\ns_cselect_b32 s43, {NW*16384}, 0\ns_add_u32 s34, s34, s43\ns_and_b32 s45, s45, 511")
            else:
                e(f"s_add_u32 m0, s38, {slot*1024}\ns_nop 0")
                e(f"buffer_load_dwordx4 v2, s[8:11], s34 offen {spol} lds")
                e(f"s_add_u32 s34, s34, {NW*1024}")
            e(f"s_waitcnt vmcnt({DEPTH-1})")
            slot = (slot + 1) % DEPTH
    e("s_sub_u32 s39, s39, 1\ns_cmp_lg_u32 s39, 0\ns_cbranch_scc1 L_loop")
    e("s_waitcnt vmcnt(0)\ns_barrier\ns_memrealtime s[42:43]\ns_waitcnt lgkmcnt(0)")
    e("v_mov_b32 v8, s40\nv_mov_b32 v9, s41\nv_mov_b32 v10, s42\nv_mov_b32 v11, s43")
    e("s_lshl_b32 s3, s2, 4\nv_mov_b32 v12, s3")
    e("v_cmp_eq_u32 vcc, 0, v0\ns_and_saveexec_b64 s[46:47], vcc\ns_cbranch_execz L_end")
    e("global_store_dwordx4 v12, v[8:11], s[26:27]")
    e("L_end:\ns_endpgm")
    return "\n".join(L) + footer()

CASES = [
    (4, 16, 1, 0, 448, 448, 1, 0, {}),
    (4, 16, 1, 0, 448, 448, 1, 1, {}),
    (8, 16, 1, 0, 224, 448, 1, 1, {}),
    (4, 16, 1, 0, 448, 448, 1, 1, dict(reg=True)),
    (8, 16, 1, 0, 224, 448, 1, 1, dict(reg=True)),
    (4, 16, 1, 0, 112, 448, 1, 0, {}),
    (4, 16, 1, 0, 112, 448, 1, 1, {}),
    (8, 16, 1, 0, 64, 448, 1, 1, {}),
    (4, 16, 0, 1, 64, 448, 1, 0, {}),
    (1, 32, 0, 1, 256, 448, 1, 0, {}),
    (4, 16, 0, 1, 64, 448, 1, 0, dict(kdirect=True)),
    (4, 16, 0, 1, 128, 448, 2, 0, dict(kdirect=True)),
    (4, 16, 0, 1, 128, 448, 2, 0, {}),
    (4, 32, 2, 1, 64, 448, 1, 0, {}),
    (4, 32, 2, 1, 64, 448, 1, 1, {}),
    (8, 16, 2, 1, 32, 448, 1, 1, {}),
    (4, 32, 7, 2, 32, 448, 1, 1, {}),
    (8, 16, 7, 2, 16, 448, 1, 1, {}),
    (4, 32, 1, 1, 128, 448, 2, 1, {}),
    (8, 16, 1, 1, 64, 448, 2, 1, {}),
    (4, 32, 7, 4, 32, 448, 2, 1, {}),
    (8, 16, 7, 4, 16, 448, 2, 1, {}),
]

if __name__ == "__main__":
    if len(sys.argv) > 1 and sys.argv[1] == "asm":
        from harness import assemble
        for i, c in enumerate(CASES):
            open("mb1_tmp.s", "w").write(gen(*c[:8], **c[8])); assemble("mb1_tmp.s")
        print("assembled", len(CASES)); sys.exit(0)
    from harness import *
    R = Runner(need_ref=False)
    for mode in (1, 2):
        for i, c in enumerate(CASES):
            p = f"mb1_{i}.s"; open(p, "w").write(gen(*c[:8], **c[8]))
            launch = R.load(p)
            ev, ink = [], []
            for it in range(10):
                t = R.timed(launch, mode, it)
                st = R.ws(np.uint64, (256, 2))
                if it >= 2: ev.append(t); ink.append((st[:, 1].max() - st[:, 0].min()) * 0.01)
            kb = c[4] * c[0] * (c[2] + c[3])
            print(f"mode {mode} NW={c[0]} D={c[1]} WN={c[2]} SN={c[3]} it={c[4]} share={c[6]} rot={c[7]} {c[8]}: event {np.median(ev):.2f} inker {np.median(ink):.2f}  KiB/CU {kb} -> {kb*1.024/np.median(ink):.1f} GB/s/CU", flush=True)
```

```python
import sys, re
sys.path.insert(0, "bench")
from base import *
import base_diag as bd
KN = "standalone__gqa_block_cached__near_ridge_kernel"
def embed(src):
    lines = src.split("\n")
    m = re.match(r"; @launch (.*)", lines[0])
    body = "\n".join(l for l in lines[1:] if not l.startswith(".amdgcn_target")).replace(KN, "probe_kernel")
    return body, "; @launch kernel=probe_kernel " + m.group(1)
def build(probe_src, mult=4):
    ks = [k1_qproj(""), k2_attn(""), k3_oproj(""), k4_sum()]
    s0, s1, d = bd.stamp("st0_kernel", 0), bd.stamp("st1_kernel", 1), bd.delay(mult)
    p = embed(probe_src)
    order = [s0[1], p[1], s1[1]] + [k[1] for k in ks] + [d[1]]
    return "\n".join(order) + '\n.amdgcn_target "amdgcn-amd-amdhsa--gfx950"\n' + "\n".join(c for c, _ in ks + [s0, s1, d, p])
if __name__ == "__main__":
    import mb1
    M = 40
    cases = {
        "a": mb1.gen(4, 16, 0, 1, 16, 448, 1, 0, spol=""),
        "b": mb1.gen(4, 16, 0, 1, 64, 448, 1, 0, spol=""),
        "c": mb1.gen(4, 16, 0, 1, 64, 448, 1, 0, spol="nt"),
        "d": mb1.gen(4, 16, 0, 1, 128, 448, 2, 0, spol=""),
        "e": mb1.gen(4, 16, 0, 1, 256, 448, 4, 0, spol=""),
        "f": mb1.gen(4, 16, 1, 0, 112, 448, 1, 1),
    }
    for n, src in cases.items():
        open(f"diag_{n}.s", "w").write(build(src, M))
```

```python
import sys, numpy as np
KN = "standalone__gqa_block_cached__near_ridge_kernel"

def footer(name=KN, vgpr=128, sgpr=96, accum=128):
    return f"""
.section .rodata,"a"
.p2align 6
.amdhsa_kernel {name}
  .amdhsa_next_free_vgpr {vgpr}
  .amdhsa_next_free_sgpr {sgpr}
  .amdhsa_accum_offset {accum}
  .amdhsa_group_segment_fixed_size 0
  .amdhsa_kernarg_size 64
  .amdhsa_user_sgpr_count 2
  .amdhsa_user_sgpr_kernarg_segment_ptr 1
  .amdhsa_system_sgpr_workgroup_id_x 1
.end_amdhsa_kernel
"""

def gen(NW, DEPTH, WN, SN, iters, wkb, share, rot, reg=False, wpol="", spol="nt", kdirect=False):
    lds = NW * DEPTH * 1024
    L = []
    e = L.append
    e(f"; @launch grid=(256,1,1) block=({NW*64},1,1) lds={lds}")
    e('.amdgcn_target "amdgcn-amd-amdhsa--gfx950"\n.text\n.globl %s\n.p2align 8\n.type %s,@function\n%s:' % (KN, KN, KN))
    e("s_cmp_ge_u32 s2, 256\ns_cbranch_scc1 L_end")
    e("s_memrealtime s[40:41]")
    e("s_load_dwordx2 s[4:5], s[0:1], 8")
    e("s_load_dwordx2 s[6:7], s[0:1], 16")
    e("s_load_dwordx2 s[24:25], s[0:1], 24")
    e("s_load_dwordx2 s[26:27], s[0:1], 56")
    e("v_lshrrev_b32 v1, 6, v0\ns_nop 0\nv_readfirstlane_b32 s30, v1")
    e("v_and_b32 v2, 63, v0\nv_lshlrev_b32 v2, 4, v2")
    if kdirect:
        e("v_and_b32 v3, 31, v0\nv_lshlrev_b32 v3, 9, v3\nv_bfe_u32 v4, v0, 5, 1\nv_lshl_add_u32 v3, v4, 4, v3")
    e("s_waitcnt lgkmcnt(0)")
    e("s_and_b32 s31, s2, 7\ns_lshr_b32 s32, s2, 3")
    sh = {1: 0, 2: 1, 4: 2}[share]
    e(f"s_lshr_b32 s33, s32, {sh}\ns_lshl_b32 s33, s33, 3\ns_add_u32 s33, s33, s31")
    nreg = 256 // share
    e(f"s_cmp_ge_u32 s33, {nreg//2}\ns_cselect_b32 s8, s6, s4\ns_cselect_b32 s9, s7, s5")
    e(f"s_and_b32 s33, s33, {nreg//2-1}\ns_lshl_b32 s34, s33, {18+sh}")
    e("s_mov_b32 s10, 0x2000000\ns_mov_b32 s11, 0x20000")
    if kdirect:
        e("s_lshl_b32 s35, s30, 14\ns_add_u32 s34, s34, s35")
    else:
        e("s_lshl_b32 s35, s30, 10\ns_add_u32 s34, s34, s35")
    e("s_mov_b32 s12, s24\ns_mov_b32 s13, s25\ns_mov_b32 s14, 0x380000\ns_mov_b32 s15, 0x20000")
    e(f"s_mul_i32 s37, s31, {448*1024}")
    e(f"s_mul_i32 s36, s32, {rot*(wkb//32)*1024 // (NW*1024) * (NW*1024)}\ns_lshl_b32 s35, s30, 10\ns_add_u32 s36, s36, s35")
    e(f"s_mul_i32 s38, s30, {DEPTH*1024}")
    per = WN + SN
    import math
    unroll = DEPTH // math.gcd(DEPTH, per)
    assert iters % unroll == 0, (iters, unroll)
    e(f"s_mov_b32 s39, {iters//unroll}")
    e("s_mov_b32 s45, 0")
    e("L_loop:")
    slot = 0
    for u in range(unroll):
        for w in range(WN):
            if reg:
                e(f"s_add_u32 s44, s37, s36")
                e(f"buffer_load_dwordx4 v[{16+4*(slot%16)}:{19+4*(slot%16)}], v2, s[12:15], s44 offen {wpol}")
            else:
                e(f"s_add_u32 m0, s38, {slot*1024}\ns_add_u32 s44, s37, s36")
                e(f"buffer_load_dwordx4 v2, s[12:15], s44 offen {wpol} lds")
            e(f"s_add_u32 s36, s36, {NW*1024}\ns_cmp_ge_u32 s36, {wkb*1024}\ns_cselect_b32 s43, {wkb*1024}, 0\ns_sub_u32 s36, s36, s43")
            e(f"s_waitcnt vmcnt({DEPTH-1})")
            slot = (slot + 1) % DEPTH
        for s in range(SN):
            if kdirect:
                e(f"s_add_u32 s44, s34, s45")
                e(f"buffer_load_dwordx4 v[{16+4*(slot%16)}:{19+4*(slot%16)}], v3, s[8:11], s44 offen {spol}")
                e(f"s_add_u32 s45, s45, 32\ns_cmp_eq_u32 s45, 512\ns_cselect_b32 s43, {NW*16384}, 0\ns_add_u32 s34, s34, s43\ns_and_b32 s45, s45, 511")
            else:
                e(f"s_add_u32 m0, s38, {slot*1024}\ns_nop 0")
                e(f"buffer_load_dwordx4 v2, s[8:11], s34 offen {spol} lds")
                e(f"s_add_u32 s34, s34, {NW*1024}")
            e(f"s_waitcnt vmcnt({DEPTH-1})")
            slot = (slot + 1) % DEPTH
    e("s_sub_u32 s39, s39, 1\ns_cmp_lg_u32 s39, 0\ns_cbranch_scc1 L_loop")
    e("s_waitcnt vmcnt(0)\ns_barrier\ns_memrealtime s[42:43]\ns_waitcnt lgkmcnt(0)")
    e("v_mov_b32 v8, s40\nv_mov_b32 v9, s41\nv_mov_b32 v10, s42\nv_mov_b32 v11, s43")
    e("s_lshl_b32 s3, s2, 4\nv_mov_b32 v12, s3")
    e("v_cmp_eq_u32 vcc, 0, v0\ns_and_saveexec_b64 s[46:47], vcc\ns_cbranch_execz L_end")
    e("global_store_dwordx4 v12, v[8:11], s[26:27]")
    e("L_end:\ns_endpgm")
    return "\n".join(L) + footer()

CASES = [
    (4, 16, 0, 1, 16, 448, 1, 0, dict(spol="")),
    (4, 16, 0, 1, 64, 448, 1, 0, dict(spol="")),
    (4, 16, 0, 1, 64, 448, 1, 0, dict(spol="nt")),
    (4, 16, 0, 1, 128, 448, 2, 0, dict(spol="")),
    (4, 16, 0, 1, 128, 448, 2, 0, dict(spol="nt")),
    (4, 16, 0, 1, 256, 448, 4, 0, dict(spol="")),
    (4, 16, 1, 0, 112, 448, 1, 1, {}),
]

if __name__ == "__main__":
    if len(sys.argv) > 1 and sys.argv[1] == "asm":
        from harness import assemble
        for i, c in enumerate(CASES):
            open("mb1_tmp.s", "w").write(gen(*c[:8], **c[8])); assemble("mb1_tmp.s")
        print("assembled", len(CASES)); sys.exit(0)
    from harness import *
    R = Runner(need_ref=False)
    for mode in (5, 6):
        for i, c in enumerate(CASES):
            p = f"mb1_{i}.s"; open(p, "w").write(gen(*c[:8], **c[8]))
            launch = R.load(p)
            ev, ink = [], []
            for it in range(10):
                t = R.timed(launch, mode, it)
                st = R.ws(np.uint64, (256, 2))
                if it >= 2: ev.append(t); ink.append((st[:, 1].max() - st[:, 0].min()) * 0.01)
            kb = c[4] * c[0] * (c[2] + c[3])
            print(f"mode {mode} NW={c[0]} D={c[1]} WN={c[2]} SN={c[3]} it={c[4]} share={c[6]} rot={c[7]} {c[8]}: event {np.median(ev):.2f} inker {np.median(ink):.2f}  KiB/CU {kb} -> {kb*1.024/np.median(ink):.1f} GB/s/CU", flush=True)
```

```python
import sys, numpy as np
from mb1 import footer, KN

def gen(kind, nseg=8, seg_ins=256, NW=4):
    L = []; e = L.append
    e(f"; @launch grid=(256,1,1) block=({NW*64},1,1) lds=0")
    e('.amdgcn_target "amdgcn-amd-amdhsa--gfx950"\n.text\n.globl %s\n.p2align 8\n.type %s,@function\n%s:' % (KN, KN, KN))
    e("s_cmp_ge_u32 s2, 256\ns_cbranch_scc1 L_end")
    e("s_memrealtime s[60:61]")
    e("s_load_dwordx2 s[12:13], s[0:1], 56")
    for r in range(32, 64): e(f"v_mov_b32 v{r}, 0")
    e("s_waitcnt lgkmcnt(0)")
    e("s_memtime s[16:17]")
    for s in range(nseg):
        for i in range(seg_ins):
            if kind == "valu8": e(f"v_fma_f32 v{32+i%8}, v40, v41, v42")
            elif kind == "valu4": e(f"v_add_f32 v{32+i%8}, v40, v41")
            elif kind == "mix":
                if i % 3 == 0: e("v_mfma_f32_32x32x16_bf16 v[48:63], v[44:47], v[44:47], v[48:63]")
                else: e(f"v_fma_f32 v{32+i%8}, v40, v41, v42")
        e(f"s_memtime s[{18+2*s}:{19+2*s}]")
    e("s_memrealtime s[62:63]")
    e("s_waitcnt lgkmcnt(0)")
    e(f"s_lshl_b32 s4, s2, 8\nv_mov_b32 v12, s4")
    e("v_cmp_eq_u32 vcc, 0, v0\ns_and_saveexec_b64 s[6:7], vcc\ns_cbranch_execz L_end")
    for i in range(nseg):
        e(f"s_sub_u32 s5, s{18+2*i}, s{16+2*i}\nv_mov_b32 v8, s5\nglobal_store_dword v12, v8, s[12:13] offset:{4*i}")
    e(f"s_sub_u32 s5, s62, s60\nv_mov_b32 v8, s5\nglobal_store_dword v12, v8, s[12:13] offset:{4*nseg}")
    e("L_end:\ns_endpgm")
    return "\n".join(L) + footer(sgpr=102)

def thrash():
    L = []; e = L.append
    e(f"; @launch grid=(1024,1,1) block=(256,1,1) lds=0")
    e('.amdgcn_target "amdgcn-amd-amdhsa--gfx950"\n.text\n.globl %s\n.p2align 8\n.type %s,@function\n%s:' % (KN, KN, KN))
    e(".rept 24000\nv_fma_f32 v1, v2, v3, v4\n.endr\ns_endpgm")
    return "\n".join(L) + footer()

if __name__ == "__main__":
    from harness import *
    if len(sys.argv) > 1:
        for k in ("valu8", "valu4", "mix"):
            open("mb_tmp.s", "w").write(gen(k)); assemble("mb_tmp.s")
        open("mb_tmp.s", "w").write(thrash()); assemble("mb_tmp.s"); sys.exit(0)
    R = Runner(need_ref=False)
    np.set_printoptions(linewidth=250)
    open("thr.s", "w").write(thrash()); thr = R.load("thr.s")
    for k in ("valu8", "valu4", "mix"):
        p = f"mb6_{k}.s"; open(p, "w").write(gen(k)); launch = R.load(p)
        for name in ("first", "warm", "flushL2", "thrash", "thrash+flush"):
            if name.startswith("thrash"): thr()
            R.timed(launch, 1 if "flush" in name else 0, 0)
            st = R.ws(np.uint32, (256, 64))[:, :9]
            print(k, name, "median", np.median(st, axis=0).astype(int), "max", st.max(axis=0), flush=True)
```
